```python
import torch

def _softmax(x, axis=-1):
    return torch.softmax(x, dim=axis)

def _gelu(x):
    return torch.nn.functional.gelu(x, approximate='tanh')

def _silu(x):
    return torch.nn.functional.silu(x)

def _sigmoid(x):
    return torch.sigmoid(x)

def _layernorm(x, axis=-1, eps=1e-05):
    m = x.mean(dim=axis, keepdim=True)
    v = x.var(dim=axis, keepdim=True, unbiased=False)
    return (x - m) / torch.sqrt(v + eps)

def _scatter_add(tgt, idx, src, axis=0):
    return tgt.clone().index_add_(axis, idx, src)

def _segment_sum(src, seg, n):
    out = torch.zeros((n,) + src.shape[1:], dtype=src.dtype)
    return out.index_add_(0, seg, src)

def _pad(x, pw):
    flat = tuple((v for pair in reversed(pw) for v in pair))
    return torch.nn.functional.pad(x, flat)
kernel_name = 'adaLN_cond__mha_block__geglu_ffn__prompt'

def setup_inputs():

    _w = lambda a: (lambda t: t.to(torch.bfloat16) if t.is_floating_point() else t)(torch.as_tensor(a))

    def _A_setup():
        B, S, D, H = (1, 2048, 1024, 32)
        return {'x': _w((lambda *s: torch.randn(*s, dtype=torch.bfloat16) * 0.05)(B, S, D)), 'wqkv': _w((lambda *s: torch.randn(*s, dtype=torch.bfloat16) * 0.05)(D, 3 * D)), 'wo': _w((lambda *s: torch.randn(*s, dtype=torch.bfloat16) * 0.05)(D, D))}
    _A_in = _A_setup()

    def _B_setup():
        B, S, D, F = (1, 2048, 1024, 3584)
        return {'x': _w((lambda *s: torch.randn(*s, dtype=torch.bfloat16) * 0.05)(B, S, D)), 'w_gate': _w((lambda *s: torch.randn(*s, dtype=torch.bfloat16) * 0.05)(D, F)), 'w_up': _w((lambda *s: torch.randn(*s, dtype=torch.bfloat16) * 0.05)(D, F)), 'w_down': _w((lambda *s: torch.randn(*s, dtype=torch.bfloat16) * 0.05)(F, D))}
    _B_in = _B_setup()
    return {'A_x': _A_in['x'], 'A_wqkv': _A_in['wqkv'], 'A_wo': _A_in['wo'], 'B_x': _B_in['x'], 'B_w_gate': _B_in['w_gate'], 'B_w_up': _B_in['w_up'], 'B_w_down': _B_in['w_down'], 'c': _w((lambda *s: torch.randn(*s, dtype=torch.bfloat16) * 0.1)(1, 1024) * 8.0), 'w_mod': _w((lambda *s: torch.randn(*s, dtype=torch.bfloat16) * 0.1)(1024, 6 * 1024) * 1024 ** (-0.5) * 8.0)}

def reference(A_x, A_wqkv, A_wo, B_x, B_w_gate, B_w_up, B_w_down, c, w_mod):

    def _A_ref(x, wqkv, wo):
        B, S, D = x.shape
        H = 32
        Dh = D // H
        qkv = (lambda x, *d: x.permute(*d))((x @ wqkv).reshape(B, S, 3, H, Dh), 2, 0, 3, 1, 4)
        q, k, v = (qkv[0], qkv[1], qkv[2])
        scores = torch.einsum('bhqd,bhkd->bhqk', q, k) * Dh ** (-0.5)
        p = _softmax(scores, axis=-1)
        o = torch.einsum('bhqk,bhkd->bhqd', p, v)
        return (lambda x, *d: x.permute(*d))(o, 0, 2, 1, 3).reshape(B, S, D) @ wo

    def _B_ref(x, w_gate, w_up, w_down):
        return _gelu(x @ w_gate) * (x @ w_up) @ w_down
    x = A_x
    mod = (_silu(c) @ w_mod).reshape(c.shape[0], 6, 1, -1)
    sa, ca, ga, sb, cb, gb = (mod[:, 0].clone(), mod[:, 1].clone(), mod[:, 2].clone(), mod[:, 3].clone(), mod[:, 4].clone(), mod[:, 5].clone())
    h = _layernorm(x, axis=-1) * (1 + ca) + sa
    x = x + ga * _A_ref(h, A_wqkv, A_wo)
    h = _layernorm(x, axis=-1) * (1 + cb) + sb
    x = x + gb * _B_ref(h, B_w_gate, B_w_up, B_w_down)
    return x
```

```python
from core import *
from small import ut_job, GV_LDS, xg_allreduce

QF, NM, OA, LA, ONES, IDX, SB, KB, VB = 16, 32, 64, 96, 104, 108, 112, 176, 192
FLAG = 65536

def k_attn(a):
    name = "attn_kernel"
    kernel_head(a, name)
    end = a.label("end"); side = a.label("side"); start = a.label("start"); fin = a.label("fin"); skipm = a.label("skipm")
    a(f"""
    s_cmp_ge_u32 s2, 256
    s_cbranch_scc1 {side}
    s_load_dwordx2 s[4:5], s[0:1], {KA_WS}
    v_lshrrev_b32 v1, 6, v0
    v_and_b32 v0, 63, v0
    v_readfirstlane_b32 s20, v1
    s_and_b32 s23, s2, 7
    s_lshr_b32 s24, s2, 3
    s_lshl_b32 s21, s23, 2
    s_lshr_b32 s25, s24, 3
    s_add_u32 s21, s21, s25
    s_and_b32 s22, s24, 7
    s_lshl_b32 s22, s22, 3
    s_lshl_b32 s25, s20, 1
    s_add_u32 s22, s22, s25
    v_lshlrev_b32 v2, 4, v0
    s_lshl_b32 s25, s21, 18
    s_add_u32 s25, s25, {WS_KV}
    s_lshl_b32 s26, s21, 6
    s_add_u32 s26, s26, s22
    s_lshl_b32 s26, s26, 11
    s_lshl_b32 s18, s20, 12
    s_mov_b32 s27, 0
    s_waitcnt lgkmcnt(0)
    """)
    srd_from(a, 8, 4, "s25", 262144)
    srd_from(a, 12, 4, WS_Q, 4 << 20)
    srd_from(a, 28, 4, WS_O, 4 << 20)
    for i in range(4):
        a(f"buffer_load_dwordx4 v[{QF+4*i}:{QF+4*i+3}], v2, s[12:15], s26 offen offset:{i*1024}")
    a(f"""
    v_and_b32 v3, 7, v0
    v_mov_b32 v4, 0x3f803f80
    v_cmp_eq_u32 vcc, 0, v3
    v_cmp_eq_u32 s[32:33], 4, v3
    s_nop 1
    v_cndmask_b32 v{ONES}, 0, v4, vcc
    v_cndmask_b32 v{ONES+1}, 0, v4, vcc
    v_cndmask_b32 v{ONES+2}, 0, v4, s[32:33]
    v_cndmask_b32 v{ONES+3}, 0, v4, s[32:33]
    v_mov_b32 v{IDX}, 0xdddddddd
    {start}:
    s_mov_b32 s16, s18
    """)
    def dma(slot, i): return f"buffer_load_dwordx4 v2, s[8:11], s16 offen offset:{i*1024} lds"
    for st in range(4):
        a(f"s_add_u32 m0, s18, {st*16384}")
        a("s_nop 0")
        for i in range(4 if st < 3 else 3): a(dma(st, i))
        if st < 3: a("s_add_u32 s16, s16, 16384")
    for i in range(32): a(f"v_mov_b32 v{OA+i}, 0")
    for i in range(8): a(f"v_mov_b32 v{LA+i}, 0")
    for i in range(4): a(f"v_mov_b32 v{VB+12+i}, 0")
    a(f"""
    s_waitcnt vmcnt(11)
    s_barrier
    ds_read_b128 v[{KB}:{KB+3}], v2
    ds_read_b128 v[{KB+4}:{KB+7}], v2 offset:1024
    ds_read_b128 v[{VB}:{VB+3}], v2 offset:2048
    ds_read_b128 v[{VB+4}:{VB+7}], v2 offset:3072
    s_cmp_lg_u32 s27, 0
    s_waitcnt lgkmcnt(0)
    s_cbranch_scc1 {skipm}
    """)
    def maxtree(dst, s, init=False):
        if init: a(f"v_max3_f32 v{dst}, v{s}, v{s+1}, v{dst}"); k = 2
        else: a(f"v_max3_f32 v{dst}, v{s}, v{s+1}, v{s+2}"); k = 3
        while k < 15:
            a(f"v_max3_f32 v{dst}, v{s+k}, v{s+k+1}, v{dst}"); k += 2
        if k == 15: a(f"v_max_f32 v{dst}, v{s+15}, v{dst}")
    def set_negm():
        xg_allreduce(a, [4, 5], [6, 7], op="v_max_f32", do16=False)
        for qb in range(2):
            for i in range(16): a(f"v_sub_f32 v{NM+16*qb+i}, 0, v{4+qb}")
    for qb in range(2):
        s = SB + 16*(1+qb)
        a(f"v_mfma_f32_32x32x16_bf16 v[{s}:{s+15}], v[{KB}:{KB+3}], v[{QF+8*qb}:{QF+8*qb+3}], 0")
        a(f"v_mfma_f32_32x32x16_bf16 v[{s}:{s+15}], v[{KB+4}:{KB+7}], v[{QF+8*qb+4}:{QF+8*qb+7}], v[{s}:{s+15}]")
    a("s_nop 15")
    for qb in range(2): maxtree(4+qb, SB + 16*(1+qb))
    set_negm()
    a(f"{skipm}:")
    for i in range(8): a(f"v_mov_b32 v{SB+48+8+i}, 0")
    a(f"""
    v_mfma_f32_32x32x16_bf16 v[{SB}:{SB+15}], v[{KB}:{KB+3}], v[{QF}:{QF+3}], v[{NM}:{NM+15}]
    v_mfma_f32_32x32x16_bf16 v[{SB}:{SB+15}], v[{KB+4}:{KB+7}], v[{QF+4}:{QF+7}], v[{SB}:{SB+15}]
    s_mov_b32 s19, 4
    s_nop 11
    """)
    def qk(i, j):
        s = SB + 16*(i % 4); qb = i % 2; kb = KB + 8*((i//2) % 2) + 4*j; q = QF + 8*qb + 4*j
        cc = f"v[{NM+16*qb}:{NM+16*qb+15}]" if j == 0 else f"v[{s}:{s+15}]"
        return f"v_mfma_f32_32x32x16_bf16 v[{s}:{s+15}], v[{kb}:{kb+3}], v[{q}:{q+3}], {cc}"
    def pv(i, j):
        s = SB + 16*(i % 4) + 8*j; o = OA + 16*(i % 2); vb = VB + 8*((i//2) % 2) + 4*j
        return f"v_smfmac_f32_32x32x32_bf16 v[{o}:{o+15}], v[{vb}:{vb+3}], v[{s}:{s+7}], v{IDX}"
    def sm(i, j):
        s = SB + 16*(i % 4) + 8*j; l = LA + 4*(i % 2)
        return f"v_smfmac_f32_16x16x64_bf16 v[{l}:{l+3}], v[{ONES}:{ONES+3}], v[{s}:{s+7}], v{IDX}"
    lp = a.label("attn")
    a(".p2align 5")
    a(f"{lp}:")
    for i in range(32):
        st, ti = divmod(i, 8)
        e = [f"v_exp_f32 v{SB+16*(i%4)+k}, v{SB+16*(i%4)+k}" for k in range(16)]
        kt1 = i//2 + 1
        off = (kt1 % 16)*4096
        if i % 2 == 0:
            r = KB + 8*(kt1 % 2)
            rd = [f"ds_read_b128 v[{r}:{r+3}], v2 offset:{off}", f"ds_read_b128 v[{r+4}:{r+7}], v2 offset:{off+1024}"]
        else:
            r = VB + 8*(kt1 % 2)
            rd = [f"ds_read_b128 v[{r}:{r+3}], v2 offset:{off+2048}", f"ds_read_b128 v[{r+4}:{r+7}], v2 offset:{off+3072}"]
        x1, x2 = [], []
        if ti == 6:
            a("s_waitcnt vmcnt(8) lgkmcnt(0)")
            a(qk(i+1, 0))
            a("s_barrier")
            x1 = [f"s_add_u32 m0, s18, {st*16384}"]
            x2 = [dma(st, 0)]
        else:
            a("s_waitcnt lgkmcnt(0)")
            a(qk(i+1, 0))
            if ti == 7: x1 = [dma(st, 1)]; x2 = [dma(st, 2)]
            if ti == 0: x1 = [dma(st-1, 3)]; x2 = ["s_add_u32 s16, s16, 16384"]
        seq = e[0:3] + [pv(i-1, 1)] + rd[:1] + e[3:5] + [qk(i+1, 1)] + rd[1:] + e[5:8] + [sm(i-1, 1)] + x1 + e[8:10] + [pv(i, 0)] + e[10:13] + [sm(i, 0)] + x2 + e[13:16]
        for t in seq: a(t)
    a(f"""
    s_sub_u32 s19, s19, 1
    s_cmp_lg_u32 s19, 0
    s_cbranch_scc1 {lp}
    """)
    a(pv(31, 1)); a(sm(31, 1))
    a(f"""
    s_waitcnt vmcnt(0) lgkmcnt(0)
    s_nop 15
    s_cmp_lg_u32 s27, 0
    s_cbranch_scc1 {fin}
    v_mul_f32 v4, 0, v{OA}
    """)
    for i in range(1, 32): a(f"v_fmac_f32 v4, 0, v{OA+i}")
    a(f"""
    v_add_f32 v6, v{LA}, v{LA+4}
    v_add_f32 v4, v4, v6
    v_mov_b32 v5, {f2u(2.0**100):#x}
    v_cmp_nlt_f32 vcc, v4, v5
    s_cmp_lg_u64 vcc, 0
    s_cselect_b32 s32, 1, 0
    v_mov_b32 v4, s32
    s_lshl_b32 s33, s20, 2
    s_add_u32 s33, s33, {FLAG}
    v_mov_b32 v5, s33
    v_mov_b32 v6, {FLAG}
    ds_write_b32 v5, v4
    s_waitcnt lgkmcnt(0)
    s_barrier
    ds_read_b128 v[8:11], v6
    s_waitcnt lgkmcnt(0)
    v_or_b32 v8, v8, v9
    v_or3_b32 v8, v8, v10, v11
    s_nop 0
    v_readfirstlane_b32 s32, v8
    s_nop 3
    s_cmp_eq_u32 s32, 0
    s_cbranch_scc1 {fin}
    """)
    lm = a.label("maxl")
    a(f"""
    v_mov_b32 v4, 0xff800000
    v_mov_b32 v5, 0xff800000
    s_mov_b32 s16, 0
    {lm}:
    buffer_load_dwordx4 v[{KB}:{KB+3}], v2, s[8:11], s16 offen
    buffer_load_dwordx4 v[{KB+4}:{KB+7}], v2, s[8:11], s16 offen offset:1024
    s_waitcnt vmcnt(0)
    """)
    for qb in range(2):
        s = SB + 16*(1+qb)
        a(f"v_mfma_f32_32x32x16_bf16 v[{s}:{s+15}], v[{KB}:{KB+3}], v[{QF+8*qb}:{QF+8*qb+3}], 0")
        a(f"v_mfma_f32_32x32x16_bf16 v[{s}:{s+15}], v[{KB+4}:{KB+7}], v[{QF+8*qb+4}:{QF+8*qb+7}], v[{s}:{s+15}]")
    a("s_nop 15")
    for qb in range(2): maxtree(4+qb, SB + 16*(1+qb), init=True)
    a(f"""
    s_add_u32 s16, s16, 4096
    s_cmp_lt_u32 s16, 262144
    s_cbranch_scc1 {lm}
    """)
    set_negm()
    a(f"""
    s_mov_b32 s27, 1
    s_branch {start}
    {fin}:
    v_rcp_f32 v4, v{LA}
    v_rcp_f32 v5, v{LA+4}
    v_bfe_u32 v6, v0, 4, 1
    v_lshlrev_b32 v6, 15, v6
    v_and_b32 v7, 15, v0
    v_lshl_add_u32 v6, v7, 4, v6
    v_lshrrev_b32 v7, 5, v0
    v_lshl_add_u32 v6, v7, 8, v6
    s_lshl_b32 s32, s22, 16
    s_lshl_b32 s33, s21, 10
    s_add_u32 s32, s32, s33
    s_add_u32 s33, s32, 65536
    """)
    for qb in range(2):
        o = OA + 16*qb
        for i in range(16): a(f"v_mul_f32 v{o+i}, v{o+i}, v{4+qb}")
        for i in range(8): a(f"v_cvt_pk_bf16_f32 v{SB+8*qb+i}, v{o+2*i}, v{o+2*i+1}")
        for j in range(2):
            p = SB + 8*qb + 4*j
            a(f"buffer_store_dwordx4 v[{p}:{p+3}], v6, s[28:31], s{32+qb} offen offset:{j*512}")
    a("s_endpgm")
    a(f"""
    {side}:
    s_sub_u32 s34, s2, 256
    s_cmp_ge_u32 s34, 224
    s_cbranch_scc1 {end}
    """)
    ut_job(a, 34)
    a(f"{end}:")
    a("s_endpgm")
    return dict(name=name, grid=480, block=256, lds=GV_LDS, desc=kernel_desc(name, 208, 0, 48))
```

```python
S, D, H, DH, F = 2048, 1024, 32, 32, 3584

WS_MOD   = 0x0000000
WS_UT    = 0x0010000
WS_STATS = 0x0040000
WS_H     = 0x0100000
WS_Q     = 0x0500000
WS_KV    = 0x0900000
WS_O     = 0x1100000
WS_Y     = 0x1500000
WS_X2    = 0x1900000
WS_ACT   = 0x1D00000
WS_END   = WS_ACT + 128*112*1024

KA_X, KA_WQKV, KA_WO, KA_BX, KA_WG, KA_WU, KA_WD, KA_C, KA_WMOD, KA_OUT, KA_DBG, KA_WS = [8*i for i in range(12)]

class Asm:
    def __init__(self):
        self.lines = []
        self.uid = 0
    def __call__(self, s):
        for l in s.split("\n"):
            l = l.strip()
            if l: self.lines.append(l if l.endswith(":") or l.startswith(".") else "  " + l)
    def label(self, base):
        self.uid += 1
        return f"L_{base}_{self.uid}"
    def text(self):
        return "\n".join(self.lines) + "\n"

def vr(b, n=1, p="v"):
    return f"{p}{b}" if n == 1 else f"{p}[{b}:{b+n-1}]"
def ar(b, n=1): return vr(b, n, "a")
def sr(b, n=1): return vr(b, n, "s")

def f2u(x):
    import struct
    return struct.unpack("<I", struct.pack("<f", x))[0]

def kernel_head(a, name):
    a(f""".text
.globl {name}
.p2align 8
.type {name},@function
{name}:""")

def kernel_desc(name, vgpr, agpr, sgpr=96):
    acc = (vgpr + 3)//4*4
    tot = acc + agpr if agpr else vgpr
    return f""".section .rodata,"a"
.p2align 6
.amdhsa_kernel {name}
  .amdhsa_next_free_vgpr {tot}
  .amdhsa_next_free_sgpr {sgpr}
  .amdhsa_accum_offset {acc}
  .amdhsa_group_segment_fixed_size 0
  .amdhsa_kernarg_size 96
  .amdhsa_user_sgpr_count 2
  .amdhsa_user_sgpr_kernarg_segment_ptr 1
  .amdhsa_system_sgpr_workgroup_id_x 1
  .amdhsa_float_denorm_mode_32 3
  .amdhsa_float_denorm_mode_16_64 3
.end_amdhsa_kernel
"""

def srd_finish(a, s, nbytes):
    a(f"s_mov_b32 s{s+2}, {nbytes:#x}")
    a(f"s_mov_b32 s{s+3}, 0x20000")

def srd_from(a, s, base, off, nbytes):
    o = f"{off:#x}" if isinstance(off, int) else off
    a(f"s_add_u32 s{s}, s{base}, {o}")
    a(f"s_addc_u32 s{s+1}, s{base+1}, 0")
    srd_finish(a, s, nbytes)
```

```python
from core import *

class GemmCfg:
    pass

def gemm_mainloop(a, c):
    TB, NB, KS, RW = c.TB, c.NB, c.KS, c.RW
    R = 4
    ns = KS*NB*TB
    nfr = KS*NB
    nrd = 2*nfr
    b = ns - c.bar
    A0 = 0
    W0 = R*KS*TB*4
    c.agprs = W0 + RW*4
    assert (R*nfr) % RW == 0
    def actreg(st, s, t): return A0 + (((st % R)*KS + s)*TB + t)*4
    def wreg(F): return W0 + (F % RW)*4
    def rdop(st, j):
        f, q = j//2, j % 2
        s, n = f//NB, f % NB
        key, imm = c.rd(s, n, q)
        sl = st % R
        bases = c.rd_base[key]
        if len(bases) == 1: bv, off = bases[0], sl*c.slot_bytes + imm
        else: bv, off = bases[sl//2], (sl % 2)*c.slot_bytes + imm
        assert off < 65536
        r = wreg(st*nfr + f) + 2*q
        return ("ds", f"ds_read_b64_tr_b16 a[{r}:{r+1}], v{bv} offset:{off}", (st, j))
    def vm_ops(t):
        tg = t + 3
        dm, ac = [], []
        for i in range(c.ndma):
            pre = []
            if i % 4 == 0:
                pre.append(f"s_add_u32 m0, s{c.sM0}, {(tg % R)*c.slot_bytes + (i//4)*4096}")
            dm.append((pre, f"buffer_load_dwordx4 v{c.dma_v+i}, s[{c.sW}:{c.sW+3}], s{c.sWoff} offen offset:{(i%4)*1024} lds"))
        for s in range(KS):
            for t_ in range(TB):
                r = actreg(tg, s, t_)
                ac.append(([], f"buffer_load_dwordx4 a[{r}:{r+3}], v{c.act_v+t_}, s[{c.sA}:{c.sA+3}], s{c.sAoff} offen offset:{s*1024}"))
        return dm, ac
    L = c.ndma + KS*TB
    assert 3*L <= 63
    def rd_pos(st, j): return st*ns + b - ns + (j*(ns - c.gap))//nrd
    for st in (4,):
        for f in range(nfr):
            assert rd_pos(st, 2*f) >= (st*nfr + f - RW)*TB + TB - 1, ("ring", f)
            lead = (st*nfr + f)*TB - rd_pos(st, 2*f+1)
            assert lead >= c.minlead, ("lead", f, lead)
    attach = {}
    def at(p, op): attach.setdefault(p, []).append(op)
    for st in range(-1, 10):
        at(st*ns + b - 1, ("bar", None, st))
    for st in range(0, 10):
        for j in range(nrd): at(rd_pos(st, j), rdop(st, j))
    for t in range(0, 10):
        dm, ac = vm_ops(t)
        lo = t*ns + b - ns
        order = c.vm_order(dm, ac) if hasattr(c, "vm_order") else dm + ac
        span0 = lo if not getattr(c, "vm_start0", False) else t*ns
        hi = t*ns + b - 2
        n = len(order)
        for i, (pre, op) in enumerate(order):
            p = span0 + ((2*i+1)*(hi - span0))//(2*n)
            if "lds" not in op: p = max(p, t*ns)
            for x in pre: at(p-1 if p-1 >= lo else p, ("s", x, None))
            at(p, ("vm", op, None))
        at(t*ns + b - 2, ("s", f"s_add_u32 s{c.sWoff}, s{c.sWoff}, {c.w_stage_bytes}", None))
        at(t*ns + b - 2, ("s", f"s_add_u32 s{c.sAoff}, s{c.sAoff}, {c.a_stage_bytes}", None))
        if t % R == 0:
            at(t*ns + b - 2, ("s", f"s_cmp_eq_u32 s{c.sCnt}, 1", None))
            at(t*ns + b - 2, ("s", f"s_cselect_b32 s{c.sW+2}, 0, s{c.sW+2}", None))
            at(t*ns + b - 2, ("s", f"s_cselect_b32 s{c.sA+2}, 0, s{c.sA+2}", None))
    stream = []
    issued = []
    done_upto = -1
    idx_of = {}
    pos_of = {}
    for p in range(-ns + b - 1, 9*ns):
        st, i = divmod(p, ns)
        if p >= 0:
            f, t = divmod(i, TB)
            s, n = divmod(f, NB)
            if t == 0:
                need = idx_of[(st, 2*f+1)]
                if need > done_upto:
                    k = need
                    while k+1 < len(issued) and p - pos_of[issued[k+1]] >= c.minlead: k += 1
                    cnt = min(15, len(issued) - 1 - k)
                    stream.append((st, f"s_waitcnt lgkmcnt({cnt})"))
                    done_upto = len(issued) - 1 - cnt
            acc = c.acc0 + 4*(n*TB + t)
            w = wreg(st*nfr + f); x = actreg(st, s, t)
            A, B = (f"a[{w}:{w+3}]", f"a[{x}:{x+3}]")
            if c.swap(n): A, B = B, A
            stream.append((st, f"v_mfma_f32_16x16x32_bf16 v[{acc}:{acc+3}], {A}, {B}, v[{acc}:{acc+3}]"))
        ops = attach.get(p, [])
        ops = [o for o in ops if o[0] != "bar"] + [o for o in ops if o[0] == "bar"]
        for kind, txt, info in ops:
            if kind == "bar":
                stream.append((st, f"s_waitcnt vmcnt({2*L}) lgkmcnt(0)"))
                stream.append((st, "s_barrier"))
                done_upto = len(issued) - 1
            elif kind == "ds":
                idx_of[info] = len(issued); pos_of[info] = p; issued.append(info)
                stream.append((st, txt))
            else:
                stream.append((st, txt))
    body0 = [t for st, t in stream if 0 <= st < 4]
    body1 = [t for st, t in stream if 4 <= st < 8]
    assert body0 == body1, "loop body not periodic"
    a(f"s_mov_b32 s{c.sCnt}, {c.nst//R}")
    for t in range(-3, 0):
        dm, ac = vm_ops(t)
        order = c.vm_order(dm, ac) if hasattr(c, "vm_order") else dm + ac
        for pre, op in order:
            for x in pre: a(x); a("s_nop 0")
            a(op)
        a(f"s_add_u32 s{c.sWoff}, s{c.sWoff}, {c.w_stage_bytes}")
        a(f"s_add_u32 s{c.sAoff}, s{c.sAoff}, {c.a_stage_bytes}")
    c.pre_wait(a)
    for i in range(TB*NB*4): a(f"v_mov_b32 v{c.acc0+i}, 0")
    prev = ""
    for st, t in stream:
        if st == -1:
            if "lds" in t and "m0" in prev: a("s_nop 0")
            a(t); prev = t
    lp = a.label("gemm")
    a(".p2align 5")
    a(f"{lp}:")
    prev = ""
    for t in body0:
        if t.endswith("lds") and "m0" in prev: a("s_nop 0")
        a(t); prev = t
    a(f"s_sub_u32 s{c.sCnt}, s{c.sCnt}, 1")
    a(f"s_cmp_lg_u32 s{c.sCnt}, 0")
    a(f"s_cbranch_scc1 {lp}")
    c.body_len = len(body0)
```

```python
from core import *
from gemm import *
from small import xg_allreduce, LOG2E
import math

def gemm_common_head(a, name, wka, mt_expr):
    kernel_head(a, name)
    end = a.label("end")
    a(f"""
    s_cmp_ge_u32 s2, 256
    s_cbranch_scc1 {end}
    s_load_dwordx2 s[4:5], s[0:1], {KA_WS}
    """)
    if wka is not None: a(f"s_load_dwordx2 s[8:9], s[0:1], {wka}")
    a(f"""
    v_lshrrev_b32 v1, 6, v0
    v_and_b32 v0, 63, v0
    v_readfirstlane_b32 s20, v1
    s_and_b32 s23, s2, 7
    s_lshr_b32 s24, s2, 3
    """)
    a(mt_expr)
    return end

def panel_dma_addr(a, vdst, ldw, tmp):
    a(f"""
    v_lshrrev_b32 v{tmp}, 3, v0
    v_mul_u32_u24 v{vdst}, {ldw}, v{tmp}
    v_and_b32 v{tmp}, 6, v{tmp}
    v_and_b32 v{tmp+1}, 7, v0
    v_xor_b32 v{tmp}, v{tmp}, v{tmp+1}
    v_lshl_add_u32 v{vdst}, v{tmp}, 4, v{vdst}
    """)

def panel_rd_bases(a, vb, gstride, tmp):
    a(f"""
    v_lshrrev_b32 v{tmp}, 5, v0
    v_mul_u32_u24 v{tmp}, {gstride}, v{tmp}
    v_bfe_u32 v{tmp+1}, v0, 2, 3
    v_lshl_add_u32 v{tmp}, v{tmp+1}, 7, v{tmp}
    v_and_b32 v{tmp+2}, 3, v0
    v_lshl_add_u32 v{tmp}, v{tmp+2}, 3, v{tmp}
    v_lshrrev_b32 v{tmp+1}, 1, v{tmp+1}
    """)
    for cidx in range(4):
        a(f"v_xor_b32 v{tmp+2}, {cidx}, v{tmp+1}")
        a(f"v_lshl_add_u32 v{vb+cidx}, v{tmp+2}, 5, v{tmp}")

QSCALE = LOG2E / math.sqrt(32.0)

def k_qkv(a):
    name = "qkv_kernel"
    end = gemm_common_head(a, name, KA_WQKV, """
    s_and_b32 s21, s23, 1
    s_lshl_b32 s21, s21, 3
    s_and_b32 s25, s24, 7
    s_add_u32 s21, s21, s25
    s_lshr_b32 s22, s23, 1
    s_lshl_b32 s22, s22, 2
    s_lshr_b32 s25, s24, 3
    s_add_u32 s22, s22, s25
    """)
    ldw = 3072*2
    c = GemmCfg()
    c.TB, c.NB, c.KS, c.nst, c.RW = 2, 12, 2, 16, 12
    c.acc0 = 32
    c.swap = lambda n: n >= 8
    c.slot_bytes = 24576
    c.rd = lambda s, n, q: (n % 4, (2*s+q)*6144 + (n//4)*2048)
    c.rd_base = {k: [2+k, 6+k] for k in range(4)}
    c.ndma, c.dma_v, c.act_v = 6, 10, 16
    c.sW, c.sA, c.sWoff, c.sAoff, c.sM0, c.sCnt = 8, 12, 16, 17, 18, 19
    c.w_stage_bytes, c.a_stage_bytes = 64*ldw, 2048
    c.bar, c.gap, c.minlead = 8, 8, 6
    c.pre_wait = lambda a: None
    panel_dma_addr(a, 10, ldw, 20)
    for i in range(5, -1, -1):
        p, e = divmod(i, 2)
        a(f"v_add_u32 v{10+i}, {8*e*ldw + p*2048 - (i%4)*1024}, v10")
    panel_rd_bases(a, 2, 1024, 20)
    for k in range(4): a(f"v_add_u32 v{6+k}, {2*c.slot_bytes}, v{2+k}")
    a(f"""
    v_lshlrev_b32 v16, 4, v0
    v_add_u32 v17, 32768, v16
    s_mul_i32 s16, s20, {16*ldw}
    s_lshl_b32 s25, s22, 7
    s_add_u32 s16, s16, s25
    s_mul_i32 s18, s20, 6144
    s_lshl_b32 s25, s21, 2
    s_add_u32 s26, s25, s20
    s_lshl_b32 s25, s26, 16
    s_add_u32 s25, s25, {WS_H}
    s_mov_b32 s17, 0
    s_waitcnt lgkmcnt(0)
    """)
    srd_finish(a, 8, 1024*ldw)
    srd_from(a, 12, 4, "s25", 65536)
    gemm_mainloop(a, c)
    srd_from(a, 28, 4, WS_Q, 4 << 20)
    srd_from(a, 32, 4, WS_KV, 8 << 20)
    a(f"""
    v_lshrrev_b32 v2, 4, v0
    v_and_b32 v3, 15, v0
    v_lshlrev_b32 v4, 9, v2
    v_lshl_add_u32 v5, v3, 4, v4
    v_lshrrev_b32 v6, 2, v3
    v_and_b32 v7, 3, v3
    v_lshl_add_u32 v6, v6, 3, v7
    v_lshl_add_u32 v6, v6, 4, v4
    s_lshl_b32 s25, s22, 7
    s_add_u32 s25, s25, s26
    s_lshl_b32 s36, s25, 11
    s_add_u32 s37, s36, {64*2048}
    s_lshl_b32 s38, s25, 12
    s_add_u32 s39, s38, {64*4096}
    s_mov_b32 s40, {f2u(QSCALE):#x}
    s_mov_b32 s41, s40
    """)
    acc = lambda t, n: 32 + 4*(n*2+t)
    tmp = 8
    k = 0
    def pack_store(r0, r1, vaddr, srd, soff, imm, scale):
        nonlocal k
        d = tmp + 4*(k % 4); k += 1
        if scale:
            for r in (r0, r0+2, r1, r1+2): a(f"v_pk_mul_f32 v[{r}:{r+1}], v[{r}:{r+1}], s[40:41]")
        a(f"v_cvt_pk_bf16_f32 v{d}, v{r0}, v{r0+1}")
        a(f"v_cvt_pk_bf16_f32 v{d+1}, v{r0+2}, v{r0+3}")
        a(f"v_cvt_pk_bf16_f32 v{d+2}, v{r1}, v{r1+1}")
        a(f"v_cvt_pk_bf16_f32 v{d+3}, v{r1+2}, v{r1+3}")
        a(f"buffer_store_dwordx4 v[{d}:{d+3}], v{vaddr}, s[{srd}:{srd+3}], s{soff} offen offset:{imm}")
    for hh in range(2):
        for t in range(2):
            pack_store(acc(t, 4+2*hh), acc(t, 5+2*hh), 6, 32, 38+hh, t*64, False)
        for db in range(2):
            pack_store(acc(0, 8+2*hh+db), acc(1, 8+2*hh+db), 5, 32, 38+hh, 2048+db*256, False)
        for t in range(2):
            pack_store(acc(t, 2*hh), acc(t, 1+2*hh), 5, 28, 36+hh, t*256, True)
    a(f"{end}:")
    a("s_endpgm")
    return dict(name=name, grid=256, block=256, lds=4*c.slot_bytes, desc=kernel_desc(name, 128, c.agprs, 48))

MN_4x8 = """
    s_lshr_b32 s21, s23, 1
    s_lshl_b32 s21, s21, 2
    s_and_b32 s25, s24, 3
    s_add_u32 s21, s21, s25
    s_and_b32 s22, s23, 1
    s_lshl_b32 s22, s22, 3
    s_lshr_b32 s25, s24, 2
    s_add_u32 s22, s22, s25
"""

def narrow_cfg(a, K, ws_act, perm_wo):
    ldw = 2048
    c = GemmCfg()
    c.TB, c.NB, c.KS, c.nst, c.RW = 2, 4, 4, K//128, 8
    c.acc0 = 32
    c.swap = lambda n: False
    c.slot_bytes = 16384
    if perm_wo:
        c.rd = lambda s, n, q: (n, s*4096 + q*1024); gs = 2048
    else:
        c.rd = lambda s, n, q: (n, s*4096 + q*2048); gs = 1024
    c.rd_base = {k: [2+k] for k in range(4)}
    c.ndma, c.dma_v, c.act_v = 4, 10, 16
    c.sW, c.sA, c.sWoff, c.sAoff, c.sM0, c.sCnt = 8, 12, 16, 17, 18, 19
    c.w_stage_bytes, c.a_stage_bytes = 128*ldw, 4096
    c.bar, c.gap, c.minlead = 7, 6, 5
    panel_dma_addr(a, 10, ldw, 20)
    for i in range(3, -1, -1):
        a(f"v_add_u32 v{10+i}, {8*i*ldw - i*1024}, v10")
    panel_rd_bases(a, 2, gs, 20)
    rowb = (K//32)*1024
    a(f"""
    v_lshlrev_b32 v16, 4, v0
    v_add_u32 v17, {rowb}, v16
    s_mul_i32 s16, s20, {32*ldw}
    s_lshl_b32 s25, s22, 7
    s_add_u32 s16, s16, s25
    s_lshl_b32 s18, s20, 12
    s_lshl_b32 s25, s21, 2
    s_add_u32 s26, s25, s20
    s_mul_i32 s25, s26, {2*rowb}
    s_add_u32 s25, s25, {ws_act}
    s_mov_b32 s17, 0
    s_waitcnt lgkmcnt(0)
    """)
    srd_finish(a, 8, K*ldw)
    srd_from(a, 12, 4, "s25", 2*rowb)
    return c

def unpack4(a, dst, src):
    a(f"v_lshlrev_b32 v{dst}, 16, v{src}")
    a(f"v_and_b32 v{dst+1}, 0xffff0000, v{src}")
    a(f"v_lshlrev_b32 v{dst+2}, 16, v{src+1}")
    a(f"v_and_b32 v{dst+3}, 0xffff0000, v{src+1}")

def k_wo(a):
    name = "wo_kernel"
    end = gemm_common_head(a, name, KA_WO, MN_4x8)
    a(f"s_load_dwordx2 s[28:29], s[0:1], {KA_X}")
    c = narrow_cfg(a, 1024, WS_O, True)
    srd_finish(a, 28, S*D*2)
    srd_from(a, 32, 4, WS_MOD, 6144*4)
    a(f"""
    v_and_b32 v20, 15, v0
    v_lshrrev_b32 v21, 4, v0
    v_lshlrev_b32 v22, 11, v20
    v_lshl_add_u32 v22, v21, 3, v22
    v_lshlrev_b32 v23, 4, v21
    s_lshl_b32 s36, s26, 16
    s_lshl_b32 s25, s22, 7
    s_add_u32 s36, s36, s25
    s_add_u32 s37, s36, 32768
    s_lshl_b32 s25, s22, 8
    s_add_u32 s38, s25, {2*4096}
    s_add_u32 s39, s25, {4*4096}
    """)
    for t in range(2):
        for n in range(4):
            r = 64 + (t*4+n)*2
            a(f"buffer_load_dwordx2 v[{r}:{r+1}], v22, s[28:31], s{36+t} offen offset:{n*32}")
    for n in range(4):
        a(f"buffer_load_dwordx4 v[{80+4*n}:{83+4*n}], v23, s[32:35], s38 offen offset:{n*64}")
        a(f"buffer_load_dwordx4 v[{96+4*n}:{99+4*n}], v23, s[32:35], s39 offen offset:{n*64}")
    c.pre_wait = lambda a: None
    gemm_mainloop(a, c)
    srd_from(a, 40, 4, WS_X2, 4 << 20)
    srd_from(a, 44, 4, WS_Y, 4 << 20)
    srd_from(a, 48, 4, WS_STATS, 16*2048*8)
    a(f"""
    s_lshl_b32 s36, s26, 16
    s_lshl_b32 s25, s22, 11
    s_add_u32 s36, s36, s25
    s_add_u32 s37, s36, 32768
    s_lshl_b32 s38, s22, 14
    s_lshl_b32 s25, s26, 8
    s_add_u32 s38, s38, s25
    """)
    for i in range(16): a(f"v_add_f32 v{96+i}, 1.0, v{96+i}")
    for i in range(8): a(f"v_cvt_pk_bf16_f32 v{8+i}, v{96+2*i}, v{97+2*i}")
    for i in range(4): unpack4(a, 96+4*i, 8+2*i)
    acc = lambda t, n: 32 + 4*(n*2+t)
    for t in range(2):
        for n in range(4):
            unpack4(a, 24, 64+(t*4+n)*2)
            r = acc(t, n)
            for i in range(4): a(f"v_fma_f32 v{r+i}, v{r+i}, v{80+4*n+i}, v{24+i}")
            p = 112 + t*8 + n*2
            a(f"v_cvt_pk_bf16_f32 v{p}, v{r}, v{r+1}")
            a(f"v_cvt_pk_bf16_f32 v{p+1}, v{r+2}, v{r+3}")
        for m in range(2):
            p = 112 + t*8 + m*4
            a(f"buffer_store_dwordx4 v[{p}:{p+3}], v16, s[40:43], s{36+t} offen offset:{m*1024}")
    for t in range(2):
        for n in range(4):
            unpack4(a, acc(t, n), 112 + t*8 + n*2)
        for n in range(4):
            r = acc(t, n)
            for i in range(4): a(f"v_mul_f32 v{24+i}, v{r+i}, v{96+4*n+i}")
            p = 64 + t*8 + n*2
            a(f"v_cvt_pk_bf16_f32 v{p}, v24, v25")
            a(f"v_cvt_pk_bf16_f32 v{p+1}, v26, v27")
        for m in range(2):
            p = 64 + t*8 + m*4
            a(f"buffer_store_dwordx4 v[{p}:{p+3}], v16, s[44:47], s{36+t} offen offset:{m*1024}")
    for t in range(2):
        regs = [acc(t, n)+i for n in range(4) for i in range(4)]
        a(f"v_add_f32 v{8+2*t}, v{regs[0]}, v{regs[1]}")
        for r in regs[2:]: a(f"v_add_f32 v{8+2*t}, v{8+2*t}, v{r}")
    xg_allreduce(a, [8, 10], [12, 13])
    for t in range(2):
        a(f"v_mul_f32 v{8+2*t}, {f2u(1.0/64):#x}, v{8+2*t}")
        regs = [acc(t, n)+i for n in range(4) for i in range(4)]
        for r in regs: a(f"v_sub_f32 v{r}, v{r}, v{8+2*t}")
        a(f"v_mul_f32 v{9+2*t}, v{regs[0]}, v{regs[0]}")
        for r in regs[1:]: a(f"v_fmac_f32 v{9+2*t}, v{r}, v{r}")
    xg_allreduce(a, [9, 11], [12, 13])
    a(f"""
    v_cmp_gt_u32 vcc, 16, v0
    s_nop 1
    v_cndmask_b32 v8, v10, v8, vcc
    v_cndmask_b32 v9, v11, v9, vcc
    v_lshlrev_b32 v12, 3, v0
    v_cmp_gt_u32 vcc, 32, v0
    s_and_saveexec_b64 s[52:53], vcc
    buffer_store_dwordx2 v[8:9], v12, s[48:51], s38 offen
    {end}:
    s_endpgm
    """)
    return dict(name=name, grid=256, block=256, lds=4*c.slot_bytes, desc=kernel_desc(name, 128, c.agprs, 56))

def k_down(a):
    name = "down_kernel"
    end = gemm_common_head(a, name, KA_WD, MN_4x8)
    a(f"s_load_dwordx2 s[28:29], s[0:1], {KA_OUT}")
    c = narrow_cfg(a, F, WS_ACT, False)
    srd_finish(a, 28, S*D*2)
    srd_from(a, 32, 4, WS_MOD, 6144*4)
    srd_from(a, 40, 4, WS_X2, 4 << 20)
    a(f"""
    v_lshrrev_b32 v21, 4, v0
    v_lshlrev_b32 v23, 4, v21
    s_lshl_b32 s36, s26, 16
    s_lshl_b32 s25, s22, 11
    s_add_u32 s36, s36, s25
    s_add_u32 s37, s36, 32768
    s_lshl_b32 s25, s22, 8
    s_add_u32 s38, s25, {5*4096}
    """)
    for t in range(2):
        for m in range(2):
            r = 64 + t*8 + m*4
            a(f"buffer_load_dwordx4 v[{r}:{r+3}], v16, s[40:43], s{36+t} offen offset:{m*1024}")
    for n in range(4):
        a(f"buffer_load_dwordx4 v[{80+4*n}:{83+4*n}], v23, s[32:35], s38 offen offset:{n*64}")
    c.pre_wait = lambda a: None
    gemm_mainloop(a, c)
    a(f"""
    v_and_b32 v20, 15, v0
    v_lshlrev_b32 v22, 11, v20
    v_and_b32 v24, 1, v21
    v_lshl_add_u32 v22, v24, 5, v22
    v_lshrrev_b32 v24, 1, v21
    v_lshl_add_u32 v22, v24, 4, v22
    s_lshl_b32 s36, s26, 16
    s_lshl_b32 s25, s22, 7
    s_add_u32 s36, s36, s25
    s_add_u32 s37, s36, 32768
    s_nop 3
    """)
    acc = lambda t, n: 32 + 4*(n*2+t)
    for t in range(2):
        for n in range(4):
            unpack4(a, 24, 64 + t*8 + n*2)
            r = acc(t, n)
            for i in range(4): a(f"v_fma_f32 v{r+i}, v{r+i}, v{80+4*n+i}, v{24+i}")
            p = 96 + t*8 + n*2
            a(f"v_cvt_pk_bf16_f32 v{p}, v{r}, v{r+1}")
            a(f"v_cvt_pk_bf16_f32 v{p+1}, v{r+2}, v{r+3}")
        a("s_nop 1")
        for m in range(2):
            p = 96 + t*8 + m*4
            a(f"v_permlane16_swap_b32 v{p}, v{p+2}")
            a(f"v_permlane16_swap_b32 v{p+1}, v{p+3}")
        a("s_nop 1")
        for m in range(2):
            p = 96 + t*8 + m*4
            a(f"buffer_store_dwordx4 v[{p}:{p+3}], v22, s[28:31], s{36+t} offen offset:{m*64}")
    a(f"{end}:")
    a("s_endpgm")
    return dict(name=name, grid=256, block=256, lds=4*c.slot_bytes, desc=kernel_desc(name, 128, c.agprs, 56))

GELU_C1 = -2.0*0.7978845608028654*LOG2E
GELU_C2 = GELU_C1*0.044715

def k_gu(a):
    name = "gu_kernel"
    end = gemm_common_head(a, name, None, """
    s_and_b32 s21, s23, 1
    s_lshl_b32 s21, s21, 2
    s_and_b32 s25, s24, 3
    s_add_u32 s21, s21, s25
    s_lshr_b32 s22, s23, 1
    s_lshl_b32 s22, s22, 3
    s_lshr_b32 s25, s24, 2
    s_add_u32 s22, s22, s25
    """)
    a(f"s_load_dwordx4 s[28:31], s[0:1], {KA_WG}")
    ldw = F*2
    c = GemmCfg()
    c.TB, c.NB, c.KS, c.nst, c.RW = 4, 14, 2, 16, 7
    c.acc0 = 32
    c.swap = lambda n: False
    c.slot_bytes = 28672
    c.rd = lambda s, n, q: (0, (n % 2)*14336 + (32*s+16*q)*224 + (n//2)*32)
    c.rd_base = {0: [2, 3]}
    c.ndma, c.dma_v, c.act_v = 7, 4, 12
    c.sW, c.sA, c.sWoff, c.sAoff, c.sM0, c.sCnt = 8, 12, 16, 17, 18, 19
    c.w_stage_bytes, c.a_stage_bytes = 64*ldw, 2048
    c.bar, c.gap, c.minlead = 12, 10, 8
    UT = 4*c.slot_bytes
    L = 7 + 8
    a(f"""
    s_and_b32 s27, s22, 1
    s_and_b32 s25, s20, 1
    s_mul_i32 s25, s25, 448
    s_lshl_b32 s33, s27, 1
    v_add_u32 v24, s25, v0
    """)
    for i in range(7):
        a(f"""
        v_add_u32 v25, {64*i}, v24
        v_mul_u32_u24 v26, 4682, v25
        v_lshrrev_b32 v26, 16, v26
        v_mul_u32_u24 v27, 14, v26
        v_sub_u32 v27, v25, v27
        v_add_u32 v27, s33, v27
        v_subrev_u32 v28, 14, v27
        v_min_u32 v27, v27, v28
        v_mul_u32_u24 v26, {ldw}, v26
        v_lshl_add_u32 v26, v27, 4, v26
        v_subrev_u32 v{4+i}, {(i%4)*1024}, v26
        """)
    a(f"""
    v_lshrrev_b32 v24, 2, v0
    v_mul_u32_u24 v2, 224, v24
    v_and_b32 v24, 3, v0
    v_lshl_add_u32 v2, v24, 3, v2
    v_add_u32 v3, {2*c.slot_bytes}, v2
    v_lshlrev_b32 v12, 4, v0
    v_add_u32 v13, 32768, v12
    v_add_u32 v14, 65536, v12
    v_add_u32 v15, 98304, v12
    s_mul_i32 s16, s22, 224
    s_mul_i32 s18, s20, 7168
    s_lshl_b32 s25, s21, 4
    s_lshl_b32 s26, s20, 2
    s_add_u32 s26, s26, s25
    s_lshl_b32 s25, s26, 15
    s_add_u32 s25, s25, {WS_Y}
    s_mov_b32 s17, 0
    s_waitcnt lgkmcnt(0)
    s_cmp_ge_u32 s20, 2
    s_cselect_b32 s8, s30, s28
    s_cselect_b32 s9, s31, s29
    """)
    srd_finish(a, 8, 1024*ldw)
    srd_from(a, 12, 4, "s25", 4*32768)
    srd_from(a, 36, 4, WS_STATS, 16*2048*8)
    srd_from(a, 40, 4, WS_UT, 4*F*4)
    a(f"""
    v_lshrrev_b32 v24, 4, v0
    v_lshlrev_b32 v24, 16, v24
    v_and_b32 v25, 15, v0
    v_lshl_add_u32 v24, v25, 3, v24
    s_lshl_b32 s32, s26, 7
    """)
    for i in range(4):
        if i: a(f"s_add_u32 s32, s32, 16384")
        for t in range(4):
            r = 160 + (t*4+i)*2
            a(f"buffer_load_dwordx2 v[{r}:{r+1}], v24, s[36:39], s32 offen offset:{t*128}")
    a(f"""
    s_lshl_b32 s33, s27, 2
    v_add_u32 v25, s33, v0
    v_subrev_u32 v26, 28, v25
    v_min_u32 v25, v25, v26
    v_lshlrev_b32 v25, 4, v25
    s_mul_i32 s32, s20, {F*4}
    s_mul_i32 s33, s22, 448
    s_add_u32 s32, s32, s33
    s_lshl_b32 s33, s20, 10
    s_add_u32 m0, s33, {UT}
    s_nop 0
    buffer_load_dwordx4 v25, s[40:43], s32 offen lds
    """)
    def pre_wait(a):
        a(f"s_waitcnt vmcnt({3*L+1})")
        for t in range(4):
            r = 160 + t*8
            a(f"v_add_f32 v{24+t}, v{r}, v{r+2}")
            a(f"v_add_f32 v{28+t}, v{r+4}, v{r+6}")
        for t in range(4): a(f"v_add_f32 v{24+t}, v{24+t}, v{28+t}")
        xg_allreduce(a, [24, 25, 26, 27], [28, 29, 30, 31])
        for t in range(4): a(f"v_mul_f32 v{24+t}, {f2u(1.0/16):#x}, v{24+t}")
        for t in range(4):
            r = 160 + t*8
            for i in range(4): a(f"v_sub_f32 v{r+2*i}, v{r+2*i}, v{24+t}")
            a(f"v_mul_f32 v{192+t}, v{r}, v{r}")
            for i in range(1, 4): a(f"v_fmac_f32 v{192+t}, v{r+2*i}, v{r+2*i}")
            a(f"v_mul_f32 v{192+t}, {f2u(64.0):#x}, v{192+t}")
            for i in range(4): a(f"v_add_f32 v{192+t}, v{192+t}, v{r+2*i+1}")
        xg_allreduce(a, [192, 193, 194, 195], [28, 29, 30, 31])
        for t in range(4):
            a(f"v_mov_b32 v{16+2*t}, {f2u(1e-5):#x}")
            a(f"v_fmac_f32 v{16+2*t}, {f2u(1.0/1024):#x}, v{192+t}")
        for t in range(4): a(f"v_rsq_f32 v{16+2*t}, v{16+2*t}")
        a("s_nop 0")
        for t in range(4): a(f"v_mul_f32 v{17+2*t}, v{24+t}, v{16+2*t}")
        for t in range(4): a(f"v_sub_f32 v{17+2*t}, 0, v{17+2*t}")
    c.pre_wait = pre_wait
    gemm_mainloop(a, c)
    acc = lambda t, n: 32 + 4*(n*4+t)
    srd_from(a, 44, 4, WS_ACT, 128*112*1024)
    a(f"""
    v_lshrrev_b32 v24, 4, v0
    v_lshlrev_b32 v24, 4, v24
    v_add_u32 v24, {UT}, v24
    v_lshlrev_b32 v25, 4, v0
    s_mul_i32 s32, s22, 7
    s_add_u32 s32, s32, 1
    s_lshr_b32 s32, s32, 1
    s_lshl_b32 s32, s32, 10
    s_mul_i32 s33, s26, {112*1024}
    s_add_u32 s48, s32, s33
    s_add_u32 s49, s48, {112*1024}
    s_add_u32 s50, s49, {112*1024}
    s_add_u32 s51, s50, {112*1024}
    s_movk_i32 s33, 3072
    s_cmp_eq_u32 s27, 1
    s_cselect_b32 s32, {(-1024+8) & 0xffffffff:#x}, s33
    s_add_u32 s52, s48, s32
    s_add_u32 s53, s49, s32
    s_add_u32 s54, s50, s32
    s_add_u32 s55, s51, s32
    s_mov_b32 s56, {f2u(GELU_C1):#x}
    s_mov_b32 s57, {f2u(GELU_C2):#x}
    s_waitcnt lgkmcnt(0)
    """)
    def ut_read(b, base):
        for v in range(4): a(f"ds_read_b128 v[{base+4*v}:{base+4*v+3}], v24 offset:{v*1024+b*64}")
    ut_read(0, 0)
    for b in range(7):
        ub = 0 if b % 2 == 0 else 48
        a("s_waitcnt lgkmcnt(0)")
        for t in range(4):
            G, U = acc(t, 2*b), acc(t, 2*b+1)
            st = 16 + 2*t
            T = [26, 28]
            for h in range(2):
                a(f"v_pk_fma_f32 v[{T[h]}:{T[h]+1}], v[{ub+2*h}:{ub+2*h+1}], v[{st}:{st+1}], v[{ub+4+2*h}:{ub+5+2*h}] op_sel:[0,1,0] op_sel_hi:[1,1,1]")
            for h in range(2):
                a(f"v_pk_fma_f32 v[{G+2*h}:{G+2*h+1}], v[{G+2*h}:{G+2*h+1}], v[{st}:{st+1}], v[{T[h]}:{T[h]+1}] op_sel:[0,0,0] op_sel_hi:[1,0,1]")
            for h in range(2):
                a(f"v_pk_fma_f32 v[{T[h]}:{T[h]+1}], v[{ub+8+2*h}:{ub+9+2*h}], v[{st}:{st+1}], v[{ub+12+2*h}:{ub+13+2*h}] op_sel:[0,1,0] op_sel_hi:[1,1,1]")
            for h in range(2):
                a(f"v_pk_fma_f32 v[{U+2*h}:{U+2*h+1}], v[{U+2*h}:{U+2*h+1}], v[{st}:{st+1}], v[{T[h]}:{T[h]+1}] op_sel:[0,0,0] op_sel_hi:[1,0,1]")
            for h in range(2):
                a(f"v_pk_mul_f32 v[{T[h]}:{T[h]+1}], v[{G+2*h}:{G+2*h+1}], v[{G+2*h}:{G+2*h+1}]")
            for h in range(2):
                a(f"v_pk_fma_f32 v[{T[h]}:{T[h]+1}], v[{T[h]}:{T[h]+1}], s[56:57], s[56:57] op_sel:[0,1,0] op_sel_hi:[1,1,0]")
            for h in range(2):
                a(f"v_pk_mul_f32 v[{T[h]}:{T[h]+1}], v[{T[h]}:{T[h]+1}], v[{G+2*h}:{G+2*h+1}]")
            for i in range(4): a(f"v_exp_f32 v{26+i}, v{26+i}")
            for h in range(2):
                a(f"v_pk_mul_f32 v[{U+2*h}:{U+2*h+1}], v[{U+2*h}:{U+2*h+1}], v[{G+2*h}:{G+2*h+1}]")
            for h in range(2):
                a(f"v_pk_add_f32 v[{T[h]}:{T[h]+1}], v[{T[h]}:{T[h]+1}], 1.0 op_sel_hi:[1,0]")
            for i in range(4): a(f"v_rcp_f32 v{26+i}, v{26+i}")
            a("s_nop 0")
            for h in range(2):
                a(f"v_pk_mul_f32 v[{U+2*h}:{U+2*h+1}], v[{U+2*h}:{U+2*h+1}], v[{T[h]}:{T[h]+1}]")
            P = acc(t, 2*b) if b % 2 == 0 else acc(t, 2*(b-1)) + 2
            a(f"v_cvt_pk_bf16_f32 v{P}, v{U}, v{U+1}")
            a(f"v_cvt_pk_bf16_f32 v{P+1}, v{U+2}, v{U+3}")
            if b % 2 == 1:
                P0 = acc(t, 2*(b-1))
                a(f"buffer_store_dwordx4 v[{P0}:{P0+3}], v25, s[44:47], s{48+t} offen offset:{(b//2)*1024}")
            elif b == 6:
                a(f"buffer_store_dwordx2 v[{P}:{P+1}], v25, s[44:47], s{52+t} offen")
            if b == 0 and t == 3: ut_read(1, 48)
            if b >= 1 and b < 6 and t == 0: ut_read(b+1, 0 if (b+1) % 2 == 0 else 48)
    a(f"{end}:")
    a("s_endpgm")
    return dict(name=name, grid=256, block=256, lds=UT+4096, desc=kernel_desc(name, 256, c.agprs, 64))
```

```python
from core import *

LOG2E = 1.4426950408889634

def xg_allreduce(a, regs, tmps, op="v_add_f32", do16=True, do32=True):
    for sw, en in (("v_permlane16_swap_b32", do16), ("v_permlane32_swap_b32", do32)):
        if not en: continue
        for r, t in zip(regs, tmps): a(f"v_mov_b32 v{t}, v{r}")
        a("s_nop 1")
        for r, t in zip(regs, tmps): a(f"{sw} v{r}, v{t}")
        a("s_nop 1")
        for r, t in zip(regs, tmps): a(f"{op} v{r}, v{r}, v{t}")

def wave_allreduce(a, r, t):
    for dpp in ("quad_perm:[1,0,3,2]", "quad_perm:[2,3,0,1]", "row_half_mirror", "row_mirror"):
        a("s_nop 1")
        a(f"v_add_f32_dpp v{r}, v{r}, v{r} {dpp} row_mask:0xf bank_mask:0xf")
    xg_allreduce(a, [r], [t])

GV_VEC = 65536
GV_RED = 65536 + 4096
GV_LDS = 65536 + 4096 + 1024

def gemv_body(a, ldw, nvec, vec_load, vec_prep, finish):
    a(f"""
    v_lshrrev_b32 v1, 6, v0
    v_and_b32 v2, 63, v0
    v_readfirstlane_b32 s21, v1
    v_lshrrev_b32 v3, 2, v2
    v_and_b32 v4, 3, v2
    s_mov_b32 s22, {ldw}
    v_mul_lo_u32 v3, v3, s22
    v_lshl_add_u32 v3, v4, 4, v3
    """)
    vec_load(a)
    a(f"""
    s_mul_i32 s23, s21, {256*ldw}
    s_add_u32 s23, s23, s20
    s_lshl_b32 s24, s21, 14
    """)
    for i in range(16):
        a(f"s_mov_b32 m0, s24")
        a(f"s_add_u32 s24, s24, 1024")
        a(f"buffer_load_dwordx4 v3, s[8:11], s23 offen lds")
        a(f"s_add_u32 s23, s23, {16*ldw}")
    a("s_waitcnt vmcnt(16)")
    vec_prep(a)
    a(f"""
    v_lshrrev_b32 v7, 4, v2
    v_lshlrev_b32 v5, 4, v7
    v_and_b32 v8, {nvec-1}, v2
    v_lshl_add_u32 v5, v8, 11, v5
    s_lshl_b32 s25, s21, 9
    s_add_u32 s25, s25, {GV_VEC}
    v_add_u32 v5, s25, v5
    v_bfe_u32 v8, v2, 2, 2
    v_lshl_add_u32 v6, v7, 3, v8
    v_lshlrev_b32 v6, 6, v6
    v_lshl_add_u32 v6, v4, 3, v6
    s_lshl_b32 s25, s21, 14
    v_add_u32 v6, s25, v6
    s_waitcnt lgkmcnt(0)
    s_barrier
    """)
    for s in range(8):
        a(f"ds_read_b128 v[{32+4*s}:{35+4*s}], v5 offset:{64*s}")
    for i in range(8): a(f"v_mov_b32 v{16+i}, 0")
    for s in range(8):
        a(f"s_waitcnt vmcnt({14-2*s})")
        for nb in range(2):
            for q in range(2):
                r = 64 + (s%2)*8 + nb*4 + q*2
                a(f"ds_read_b64_tr_b16 v[{r}:{r+1}], v6 offset:{(32*s+4*q)*64+nb*32}")
        a("s_waitcnt lgkmcnt(0)")
        for nb in range(2):
            r = 64 + (s%2)*8 + nb*4
            a(f"v_mfma_f32_16x16x32_bf16 v[{16+4*nb}:{19+4*nb}], v[{r}:{r+3}], v[{32+4*s}:{35+4*s}], v[{16+4*nb}:{19+4*nb}]")
    a(f"""
    v_and_b32 v8, 15, v2
    v_lshlrev_b32 v9, 7, v8
    v_lshl_add_u32 v9, v7, 4, v9
    s_lshl_b32 s25, s21, 8
    s_add_u32 s25, s25, {GV_RED}
    v_add_u32 v9, s25, v9
    v_cmp_gt_u32 vcc, {nvec}, v8
    s_nop 7
    s_and_saveexec_b64 s[26:27], vcc
    ds_write_b128 v9, v[16:19]
    ds_write_b128 v9, v[20:23] offset:64
    s_mov_b64 exec, s[26:27]
    v_lshlrev_b32 v9, 2, v0
    v_add_u32 v9, {GV_RED}, v9
    s_waitcnt lgkmcnt(0)
    s_barrier
    """)
    done = a.label("gv_done")
    a(f"""
    v_cmp_gt_u32 vcc, {32*nvec}, v0
    s_and_saveexec_b64 s[26:27], vcc
    s_cbranch_execz {done}
    ds_read_b32 v10, v9
    ds_read_b32 v11, v9 offset:256
    ds_read_b32 v12, v9 offset:512
    ds_read_b32 v13, v9 offset:768
    s_waitcnt lgkmcnt(0)
    v_add_f32 v10, v10, v11
    v_add_f32 v12, v12, v13
    v_add_f32 v10, v10, v12
    """)
    finish(a)
    a(f"{done}:")

def k_mod(a):
    name = "mod_kernel"
    kernel_head(a, name)
    end = a.label("end")
    a(f"""
    s_cmp_ge_u32 s2, 192
    s_cbranch_scc1 {end}
    s_load_dwordx2 s[8:9], s[0:1], {KA_WMOD}
    s_load_dwordx2 s[12:13], s[0:1], {KA_C}
    s_load_dwordx2 s[4:5], s[0:1], {KA_WS}
    s_lshl_b32 s20, s2, 6
    s_waitcnt lgkmcnt(0)
    """)
    srd_finish(a, 8, 1024*6144*2)
    srd_finish(a, 12, 2048)
    srd_from(a, 16, 4, WS_MOD, 6144*4)
    def vec_load(a):
        a("v_lshlrev_b32 v14, 3, v0")
        a("buffer_load_dwordx2 v[24:25], v14, s[12:15], 0 offen")
    def vec_prep(a):
        a(f"""
        v_lshlrev_b32 v26, 16, v24
        v_and_b32 v27, 0xffff0000, v24
        v_lshlrev_b32 v28, 16, v25
        v_and_b32 v29, 0xffff0000, v25
        """)
        for i in range(4): a(f"v_mul_f32 v{10+i}, {f2u(-LOG2E):#x}, v{26+i}")
        for i in range(4): a(f"v_exp_f32 v{10+i}, v{10+i}")
        a("s_nop 0")
        for i in range(4): a(f"v_add_f32 v{10+i}, 1.0, v{10+i}")
        for i in range(4): a(f"v_rcp_f32 v{10+i}, v{10+i}")
        a("s_nop 0")
        for i in range(4): a(f"v_mul_f32 v{10+i}, v{26+i}, v{10+i}")
        a(f"""
        v_cvt_pk_bf16_f32 v24, v10, v11
        v_cvt_pk_bf16_f32 v25, v12, v13
        v_add_u32 v14, {GV_VEC}, v14
        ds_write_b64 v14, v[24:25]
        """)
    def finish(a):
        a(f"""
        v_cvt_pk_bf16_f32 v10, v10, v10
        v_lshlrev_b32 v10, 16, v10
        v_lshlrev_b32 v11, 2, v0
        s_lshl_b32 s25, s2, 7
        buffer_store_dword v10, v11, s[16:19], s25 offen
        """)
    gemv_body(a, 6144*2, 1, vec_load, vec_prep, finish)
    a(f"{end}:")
    a("s_endpgm")
    return dict(name=name, grid=192, block=256, lds=GV_LDS, desc=kernel_desc(name, 80, 0, 32))

def ut_job(a, sj):
    a(f"""
    s_load_dwordx4 s[36:39], s[0:1], {KA_WG}
    s_load_dwordx2 s[4:5], s[0:1], {KA_WS}
    s_waitcnt lgkmcnt(0)
    s_cmp_ge_u32 s{sj}, 112
    s_cselect_b32 s8, s38, s36
    s_cselect_b32 s9, s39, s37
    s_cselect_b32 s31, 112, 0
    s_cselect_b32 s29, {2*F*4}, 0
    s_sub_u32 s31, s{sj}, s31
    s_lshl_b32 s20, s31, 6
    """)
    srd_finish(a, 8, 1024*F*2)
    srd_from(a, 12, 4, WS_MOD, 6144*4)
    srd_from(a, 16, 4, WS_UT, 4*F*4)
    def vec_load(a):
        a("v_lshlrev_b32 v14, 4, v0")
        a("s_mov_b32 s28, 0x3000")
        a("buffer_load_dwordx4 v[24:27], v14, s[12:15], s28 offen")
        a("s_mov_b32 s28, 0x4000")
        a("buffer_load_dwordx4 v[28:31], v14, s[12:15], s28 offen")
    def vec_prep(a):
        for i in range(4): a(f"v_add_f32 v{28+i}, 1.0, v{28+i}")
        a(f"""
        v_cvt_pk_bf16_f32 v10, v28, v29
        v_cvt_pk_bf16_f32 v11, v30, v31
        v_cvt_pk_bf16_f32 v12, v24, v25
        v_cvt_pk_bf16_f32 v13, v26, v27
        v_lshlrev_b32 v14, 3, v0
        v_add_u32 v14, {GV_VEC}, v14
        ds_write_b64 v14, v[10:11]
        ds_write_b64 v14, v[12:13] offset:2048
        """)
    def finish(a):
        a(f"""
        v_lshrrev_b32 v11, 5, v0
        v_mul_u32_u24 v11, {F*4}, v11
        v_and_b32 v12, 31, v0
        v_lshl_add_u32 v11, v12, 2, v11
        s_lshl_b32 s25, s31, 7
        s_add_u32 s25, s25, s29
        buffer_store_dword v10, v11, s[16:19], s25 offen
        """)
    gemv_body(a, F*2, 2, vec_load, vec_prep, finish)

def k_ln1(a):
    name = "ln1_kernel"
    kernel_head(a, name)
    end = a.label("end")
    a(f"""
    s_cmp_ge_u32 s2, 256
    s_cbranch_scc1 {end}
    s_load_dwordx2 s[8:9], s[0:1], {KA_X}
    s_load_dwordx2 s[4:5], s[0:1], {KA_WS}
    v_lshrrev_b32 v1, 6, v0
    v_and_b32 v2, 63, v0
    v_readfirstlane_b32 s21, v1
    v_lshrrev_b32 v3, 2, v2
    v_and_b32 v4, 3, v2
    v_lshlrev_b32 v5, 6, v3
    v_lshl_add_u32 v5, v4, 3, v5
    v_lshlrev_b32 v6, 1, v5
    s_lshl_b32 s22, s2, 3
    s_add_u32 s22, s22, s21
    s_lshl_b32 s23, s22, 11
    s_waitcnt lgkmcnt(0)
    """)
    srd_finish(a, 8, S*D*2)
    srd_from(a, 12, 4, WS_MOD, 6144*4)
    srd_from(a, 16, 4, WS_H, S*D*2)
    a("s_mov_b32 s24, 4096")
    for u in range(2):
        for x in range(2):
            r = 8 + (u*2+x)*2
            a(f"buffer_load_dwordx2 v[{r}:{r+1}], v5, s[8:11], s23 offen offset:{u*1024+x*32}")
    for u in range(2):
        for x in range(2):
            r = 32 + (u*2+x)*4
            a(f"buffer_load_dwordx4 v[{r}:{r+3}], v6, s[12:15], s24 offen offset:{u*2048+x*64}")
            a(f"buffer_load_dwordx4 v[{r+16}:{r+19}], v6, s[12:15], 0 offen offset:{u*2048+x*64}")
    a(f"""
    v_lshlrev_b32 v7, 10, v3
    v_lshl_add_u32 v7, v4, 8, v7
    s_lshr_b32 s25, s22, 4
    s_lshl_b32 s25, s25, 15
    s_and_b32 s26, s22, 15
    s_lshl_b32 s26, s26, 4
    s_add_u32 s25, s25, s26
    s_add_u32 s26, s25, 16384
    s_waitcnt vmcnt(8)
    """)
    for i in range(8):
        a(f"v_lshlrev_b32 v{16+2*i}, 16, v{8+i}")
        a(f"v_and_b32 v{17+2*i}, 0xffff0000, v{8+i}")
    a("v_add_f32 v64, v16, v17")
    for i in range(2, 16): a(f"v_add_f32 v64, v64, v{16+i}")
    wave_allreduce(a, 64, 65)
    a(f"v_mul_f32 v64, {f2u(1.0/1024):#x}, v64")
    for i in range(16): a(f"v_sub_f32 v{16+i}, v{16+i}, v64")
    a("v_mul_f32 v66, v16, v16")
    for i in range(1, 16): a(f"v_fmac_f32 v66, v{16+i}, v{16+i}")
    wave_allreduce(a, 66, 65)
    a(f"""
    v_mov_b32 v67, {f2u(1e-5):#x}
    v_fmac_f32 v67, {f2u(1.0/1024):#x}, v66
    v_rsq_f32 v67, v67
    s_waitcnt vmcnt(0)
    """)
    for i in range(16): a(f"v_add_f32 v{32+i}, 1.0, v{32+i}")
    for i in range(8): a(f"v_cvt_pk_bf16_f32 v{8+i}, v{32+2*i}, v{33+2*i}")
    for i in range(8):
        a(f"v_lshlrev_b32 v{32+2*i}, 16, v{8+i}")
        a(f"v_and_b32 v{33+2*i}, 0xffff0000, v{8+i}")
    for i in range(16): a(f"v_mul_f32 v{16+i}, v{16+i}, v67")
    for i in range(16): a(f"v_fma_f32 v{16+i}, v{16+i}, v{32+i}, v{48+i}")
    for i in range(8): a(f"v_cvt_pk_bf16_f32 v{8+i}, v{16+2*i}, v{17+2*i}")
    a(f"""
    buffer_store_dwordx4 v[8:11], v7, s[16:19], s25 offen
    buffer_store_dwordx4 v[12:15], v7, s[16:19], s26 offen
    {end}:
    s_endpgm
    """)
    return dict(name=name, grid=256, block=512, lds=0, desc=kernel_desc(name, 68, 0, 32))
```

```python
import sys
from core import *
import small, gemms, attn

HEADER = open("adaLN_cond__mha_block__geglu_ffn__prompt.s.ref").read().split("; Override launch")[0]

def build():
    a = Asm()
    a('.amdgcn_target "amdgcn-amd-amdhsa--gfx950"')
    ks = [small.k_mod(a), small.k_ln1(a), gemms.k_qkv(a), attn.k_attn(a), gemms.k_wo(a), gemms.k_gu(a), gemms.k_down(a)]
    head = HEADER + "".join(f"; @launch kernel={k['name']} grid=({k['grid']},1,1) block=({k['block']},1,1) lds={k['lds']}\n" for k in ks)
    return head + a.text() + "".join(k["desc"] for k in ks), ks

if __name__ == "__main__":
    txt, ks = build()
    out = sys.argv[1] if len(sys.argv) > 1 else "adaLN_cond__mha_block__geglu_ffn__prompt.s"
    open(out, "w").write(txt)
    print("written", out, len(txt))
```
